```python
import torch

def _softmax(x, axis=-1):
    return torch.softmax(x, dim=axis)

def _gelu(x):
    return torch.nn.functional.gelu(x, approximate='tanh')

def _silu(x):
    return torch.nn.functional.silu(x)

def _sigmoid(x):
    return torch.sigmoid(x)

def _layernorm(x, axis=-1, eps=1e-05):
    m = x.mean(dim=axis, keepdim=True)
    v = x.var(dim=axis, keepdim=True, unbiased=False)
    return (x - m) / torch.sqrt(v + eps)

def _scatter_add(tgt, idx, src, axis=0):
    return tgt.clone().index_add_(axis, idx, src)

def _segment_sum(src, seg, n):
    out = torch.zeros((n,) + src.shape[1:], dtype=src.dtype)
    return out.index_add_(0, seg, src)

def _pad(x, pw):
    flat = tuple((v for pair in reversed(pw) for v in pair))
    return torch.nn.functional.pad(x, flat)
kernel_name = 'standalone__kv_cache_quant_pre_rope_vs_post_rope__prompt'

def setup_inputs():

    _w = lambda a: (lambda t: t.to(torch.bfloat16) if t.is_floating_point() else t)(torch.as_tensor(a))
    B, Sq, Skv = (1, 2048, 2048)
    H, Dh0 = (32, 128)
    G = 32 if 32 > 0 else Dh0
    G = max(2, G // 2 * 2)
    Dh = max(G, Dh0 // G * G)
    Skv = max(Skv, Sq)
    ng = Dh // G
    bits = 4 if 4 > 1 else 4
    bits = max(2, min(8, bits))
    qmax = (1 << bits) - 1
    half = Dh // 2
    inv = 1.0 / 10000.0 ** (torch.arange(half) / max(1, half))
    ang_k = torch.arange(Skv)[:, None] * inv[None, :]
    ang_q = torch.arange(Skv - Sq, Skv)[:, None] * inv[None, :]
    kc = torch.cat([torch.cos(ang_k), torch.cos(ang_k)], dim=-1)
    ks = torch.cat([torch.sin(ang_k), torch.sin(ang_k)], dim=-1)
    qc = torch.cat([torch.cos(ang_q), torch.cos(ang_q)], dim=-1)
    qs = torch.cat([torch.sin(ang_q), torch.sin(ang_q)], dim=-1)
    qk_i = torch.randint(0, qmax + 1, (B, H, Skv, Dh)).to(torch.int32)
    qv_i = torch.randint(0, qmax + 1, (B, H, Skv, Dh)).to(torch.int32)
    ksc = torch.abs((lambda *s: torch.randn(*s, dtype=torch.bfloat16) * 0.2)(B, H, Skv, ng)) * 0.1 + 0.01
    kzp = torch.full((B, H, Skv, ng), qmax / 2.0)
    vsc = torch.abs((lambda *s: torch.randn(*s, dtype=torch.bfloat16) * 0.2)(B, H, Skv, ng)) * 0.1 + 0.01
    vzp = torch.full((B, H, Skv, ng), qmax / 2.0)
    return {'q': _w((lambda *s: torch.randn(*s, dtype=torch.bfloat16) * 6.4)(B, H, Sq, Dh) * 0.5), 'qk': _w(qk_i), 'k_scales': _w(ksc), 'k_zeros': _w(kzp), 'qv': _w(qv_i), 'v_scales': _w(vsc), 'v_zeros': _w(vzp), 'q_cos': _w(qc), 'q_sin': _w(qs), 'k_cos': _w(kc), 'k_sin': _w(ks)}

def reference(q, qk, k_scales, k_zeros, qv, v_scales, v_zeros, q_cos, q_sin, k_cos, k_sin):
    B, H, Sq, Dh = q.shape
    ng = k_scales.shape[-1]
    G = Dh // ng
    half = Dh // 2
    ks = (lambda x, n, axis: torch.repeat_interleave(x, n, dim=axis))(k_scales, G, axis=-1)
    kz = (lambda x, n, axis: torch.repeat_interleave(x, n, dim=axis))(k_zeros, G, axis=-1)
    k = ((lambda x, dt: x.to(dt))(qk, q.dtype) - kz) * ks
    vs = (lambda x, n, axis: torch.repeat_interleave(x, n, dim=axis))(v_scales, G, axis=-1)
    vz = (lambda x, n, axis: torch.repeat_interleave(x, n, dim=axis))(v_zeros, G, axis=-1)
    v = ((lambda x, dt: x.to(dt))(qv, q.dtype) - vz) * vs
    k1 = k[..., :half].clone()
    k2 = k[..., half:].clone()
    krh = torch.concatenate([-k2, k1], axis=-1)
    kr = k * k_cos[None, None, :, :] + krh * k_sin[None, None, :, :]
    q1 = q[..., :half].clone()
    q2 = q[..., half:].clone()
    qrh = torch.concatenate([-q2, q1], axis=-1)
    qr = q * q_cos[None, None, :, :] + qrh * q_sin[None, None, :, :]
    logits = torch.einsum('bhqd,bhkd->bhqk', qr, kr) * float(Dh) ** (-0.5)
    attn = _softmax(logits, axis=-1)
    out = torch.einsum('bhqk,bhkd->bhqd', attn, v)
    return out
```

```python
import sys, math, struct

NAME = "standalone__kv_cache_quant_pre_rope_vs_post_rope__prompt"

def f32bits(x):
    return struct.unpack("<I", struct.pack("<f", x))[0]

C_SCALE = math.log2(math.e) / math.sqrt(128.0)

class Asm:
    def __init__(self):
        self.lines = []
    def __call__(self, s):
        self.lines.append("    " + s)
    def label(self, s):
        self.lines.append(s + ":")
    def raw(self, s):
        self.lines.append(s)
    def text(self):
        return "\n".join(self.lines) + "\n"

def srd(a, d, ptr, nbytes):
    a(f"s_mov_b32 s{d}, s{ptr}")
    a(f"s_and_b32 s{d+1}, s{ptr+1}, 0xffff")
    a(f"s_mov_b32 s{d+2}, {nbytes:#x}")
    a(f"s_mov_b32 s{d+3}, 0x00020000")

def gen_prep(a):
    a.raw(".p2align 8")
    a.raw(".globl prep_kernel")
    a.raw(".type prep_kernel,@function")
    a.label("prep_kernel")
    a("s_cmp_ge_u32 s2, 1536")
    a("s_cbranch_scc1 L_prep_done")
    a("s_cmp_ge_u32 s2, 512")
    a("s_cbranch_scc1 L_prep_v")
    a("s_load_dwordx2 s[4:5], s[0:1], 8")
    a("s_load_dwordx4 s[28:31], s[0:1], 16")
    a("s_load_dwordx4 s[32:35], s[0:1], 72")
    a("s_load_dwordx2 s[6:7], s[0:1], 104")
    a("s_and_b32 s36, s2, 63")
    a("s_lshr_b32 s37, s2, 6")
    a("v_and_b32 v1, 7, v0")
    a("v_lshrrev_b32 v2, 3, v0")
    a("s_lshl_b32 s38, s36, 5")
    a("v_add_u32 v3, s38, v2")
    a("v_lshlrev_b32 v4, 9, v3")
    a("v_lshl_add_u32 v4, v1, 4, v4")
    a("v_lshlrev_b32 v5, 3, v3")
    a("v_lshlrev_b32 v6, 8, v3")
    a("v_lshl_add_u32 v6, v1, 3, v6")
    a("v_lshlrev_b32 v7, 10, v1")
    a("v_lshl_add_u32 v7, v2, 4, v7")
    a("s_lshl_b32 s39, s36, 13")
    a("v_add_u32 v7, s39, v7")
    a("s_waitcnt lgkmcnt(0)")
    srd(a, 8, 4, 32 << 20)
    srd(a, 12, 28, 512 << 10)
    srd(a, 16, 30, 512 << 10)
    srd(a, 20, 32, 512 << 10)
    srd(a, 24, 34, 512 << 10)
    srd(a, 40, 6, 32 << 20)
    for t, sr in ((0, 20), (1, 24)):
        for h in range(2):
            for hi in range(2):
                r = 8 + t * 8 + h * 4 + hi * 2
                a(f"buffer_load_dwordx2 v[{r}:{r+1}], v6, s[{sr}:{sr+3}], 0 offen offset:{h*64+hi*128}")
    a("s_lshl_b32 s44, s37, 22")
    a("s_lshl_b32 s45, s37, 16")
    a("s_lshl_b32 s46, s37, 21")
    for hd in range(4):
        b = 56 + hd * 20
        for h in range(2):
            for hi in range(2):
                r = b + h * 8 + hi * 4
                a(f"buffer_load_dwordx4 v[{r}:{r+3}], v4, s[8:11], s44 offen offset:{h*128+hi*256}")
        a(f"buffer_load_dwordx2 v[{b+16}:{b+17}], v5, s[12:15], s45 offen")
        a(f"buffer_load_dwordx2 v[{b+18}:{b+19}], v5, s[16:19], s45 offen")
        if hd < 3:
            a("s_add_u32 s44, s44, 0x100000")
            a("s_add_u32 s45, s45, 16384")
    a(f"s_mov_b32 s47, {f32bits(C_SCALE):#x}")
    a("s_mov_b32 s48, 0xffff0000")
    a("s_waitcnt vmcnt(24)")
    for t in range(2):
        for h in range(2):
            for hi in range(2):
                src = 8 + t * 8 + h * 4 + hi * 2
                dst = 24 + t * 16 + h * 8 + hi * 4
                for k in range(2):
                    a(f"v_lshlrev_b32 v{dst+2*k}, 16, v{src+k}")
                    a(f"v_and_b32 v{dst+2*k+1}, s48, v{src+k}")
    def rnd(regs, tmp):
        for i in range(0, len(regs), 2):
            a(f"v_cvt_pk_bf16_f32 v{tmp}, v{regs[i]}, v{regs[i+1]}")
            a(f"v_lshlrev_b32 v{regs[i]}, 16, v{tmp}")
            a(f"v_and_b32 v{regs[i+1]}, s48, v{tmp}")
    for hd in range(4):
        b = 56 + hd * 20
        a(f"s_waitcnt vmcnt({(3-hd)*6 + hd*2})")
        for t in range(2):
            for k in range(2):
                a(f"v_lshlrev_b32 v{8+t*4+2*k}, 16, v{b+16+t*2+k}")
                a(f"v_and_b32 v{8+t*4+2*k+1}, s48, v{b+16+t*2+k}")
        for h in range(2):
            x1 = [b + h * 8 + e for e in range(4)]
            x2 = [b + h * 8 + 4 + e for e in range(4)]
            for r in x1 + x2:
                a(f"v_cvt_f32_i32 v{r}, v{r}")
            for r in x1:
                a(f"v_sub_f32 v{r}, v{r}, v{12+h}")
            for r in x2:
                a(f"v_sub_f32 v{r}, v{r}, v{12+2+h}")
            rnd(x1 + x2, 16)
            for r in x1:
                a(f"v_mul_f32 v{r}, v{r}, v{8+h}")
            for r in x2:
                a(f"v_mul_f32 v{r}, v{r}, v{8+2+h}")
            rnd(x1 + x2, 16)
            cosL = [24 + h * 8 + e for e in range(4)]
            cosH = [24 + h * 8 + 4 + e for e in range(4)]
            sinL = [40 + h * 8 + e for e in range(4)]
            sinH = [40 + h * 8 + 4 + e for e in range(4)]
            t1 = [136 + e for e in range(4)]; t2 = [140 + e for e in range(4)]
            t3 = [144 + e for e in range(4)]; t4 = [148 + e for e in range(4)]
            for e in range(4):
                a(f"v_mul_f32 v{t1[e]}, v{x1[e]}, v{cosL[e]}")
                a(f"v_mul_f32_e64 v{t2[e]}, -v{x2[e]}, v{sinL[e]}")
                a(f"v_mul_f32 v{t3[e]}, v{x2[e]}, v{cosH[e]}")
                a(f"v_mul_f32 v{t4[e]}, v{x1[e]}, v{sinH[e]}")
            rnd(t1 + t2 + t3 + t4, 16)
            for e in range(4):
                a(f"v_add_f32 v{t1[e]}, v{t1[e]}, v{t2[e]}")
                a(f"v_add_f32 v{t3[e]}, v{t3[e]}, v{t4[e]}")
            rnd(t1 + t3, 16)
            for r in t1 + t3:
                a(f"v_mul_f32 v{r}, s47, v{r}")
            o = 152 + h * 4
            a(f"v_cvt_pk_bf16_f32 v{o}, v{t1[0]}, v{t1[1]}")
            a(f"v_cvt_pk_bf16_f32 v{o+1}, v{t1[2]}, v{t1[3]}")
            a(f"v_cvt_pk_bf16_f32 v{o+2}, v{t3[0]}, v{t3[1]}")
            a(f"v_cvt_pk_bf16_f32 v{o+3}, v{t3[2]}, v{t3[3]}")
            a(f"buffer_store_dwordx4 v[{o}:{o+3}], v7, s[40:43], s46 offen offset:{h*512}")
        if hd < 3:
            a("s_add_u32 s46, s46, 0x80000")
    a("s_endpgm")
    a.label("L_prep_v")
    a("s_load_dwordx2 s[4:5], s[0:1], 32")
    a("s_load_dwordx4 s[28:31], s[0:1], 40")
    a("s_load_dwordx2 s[6:7], s[0:1], 104")
    a("s_sub_u32 s36, s2, 512")
    a("v_lshrrev_b32 v1, 6, v0")
    a("s_lshl_b32 s36, s36, 2")
    a("v_add_u32 v1, s36, v1")
    a("v_and_b32 v2, 31, v0")
    a("v_bfe_u32 v3, v0, 5, 1")
    a("v_lshlrev_b32 v4, 4, v1")
    a("v_lshl_add_u32 v4, v3, 2, v4")
    a("v_lshlrev_b32 v5, 9, v4")
    a("v_lshl_add_u32 v5, v2, 4, v5")
    a("v_lshlrev_b32 v6, 3, v4")
    a("v_lshlrev_b32 v7, 12, v1")
    a("v_lshrrev_b32 v8, 3, v2")
    a("v_lshl_add_u32 v7, v8, 10, v7")
    a("v_lshl_add_u32 v7, v3, 9, v7")
    a("v_and_b32 v9, 7, v2")
    a("v_lshl_add_u32 v7, v9, 6, v7")
    a("v_add_u32 v7, 0x1000000, v7")
    a("v_mul_u32_u24 v8, 0x2020000, v8") if False else None
    a("v_lshlrev_b32 v9, 17, v8")
    a("v_lshl_add_u32 v9, v8, 25, v9")
    a("v_add_u32 v9, 0x01000c0c, v9")
    a("s_waitcnt lgkmcnt(0)")
    srd(a, 8, 4, 32 << 20)
    srd(a, 12, 28, 512 << 10)
    srd(a, 16, 30, 512 << 10)
    srd(a, 40, 6, 32 << 20)
    a("s_mov_b32 s44, 4096")
    a("s_mov_b32 s48, 0xffff0000")
    for jj in range(2):
        for rr in range(4):
            r = 16 + (4 * jj + rr) * 4
            so = "s44" if jj else "0"
            a(f"buffer_load_dwordx4 v[{r}:{r+3}], v5, s[8:11], {so} offen offset:{rr*512}")
    for t, sr in ((0, 12), (1, 16)):
        for jj in range(2):
            for half in range(2):
                r = 48 + t * 16 + jj * 8 + half * 4
                a(f"buffer_load_dwordx4 v[{r}:{r+3}], v6, s[{sr}:{sr+3}], 0 offen offset:{jj*64+half*16}")
    a("s_waitcnt vmcnt(0)")
    for k in range(8):
        a(f"v_perm_b32 v{80+k}, v{49+2*k}, v{48+2*k}, v9")
        a(f"v_perm_b32 v{88+k}, v{65+2*k}, v{64+2*k}, v9")
    for k in range(8):
        regs = [16 + 4 * k + e for e in range(4)]
        for r in regs:
            a(f"v_cvt_f32_i32 v{r}, v{r}")
        for r in regs:
            a(f"v_sub_f32 v{r}, v{r}, v{88+k}")
        rnd(regs, 10)
        for r in regs:
            a(f"v_mul_f32 v{r}, v{r}, v{80+k}")
    for e in range(4):
        o = 48 + e * 4
        for p in range(4):
            a(f"v_cvt_pk_bf16_f32 v{o+p}, v{16+4*(2*p)+e}, v{16+4*(2*p+1)+e}")
        a(f"buffer_store_dwordx4 v[{o}:{o+3}], v7, s[40:43], 0 offen offset:{e*16}")
    a.label("L_prep_done")
    a("s_endpgm")

def O(qb, db):  return (qb * 4 + db) * 16
def Qf(qb, ds): return 128 + (qb * 8 + ds) * 4
def Kf(ds):     return 192 + ds * 4
def Vf(i):      return 224 + i * 4
V_LDS = 1
V_DMA = 2
V_ET = 8
def PS(par, qb): return 12 + par * 2 + qb
def LT(qb): return 16 + qb
V_T0 = 18
def S(par, qb): return 64 + par * 32 + qb * 16
def CI(qb): return 128 + qb * 16
def P(par, qb, u): return 160 + par * 16 + qb * 8 + u * 4
S_THR = 50
S_M0B = 51
S_DOFF = 52
S_LOOP = 53

COST = {"exp": 8, "valu": 4, "ds": 4, "dma": 24, "salu": 4}

def sm_stream(par):
    ops = []
    def E(k):
        qb, r = k >> 4, k & 15
        ops.append(("exp", f"v_exp_f32 v{V_ET + (k & 3)}, v{S(par, qb) + r}"))
    def cons(k):
        qb, r = k >> 4, k & 15
        e = V_ET + (k & 3); ep = V_ET + ((k - 1) & 3)
        if r == 0:
            return
        if r == 1:
            ops.append(("valu", f"v_add_f32 v{PS(par, qb)}, v{ep}, v{e}"))
        else:
            ops.append(("valu", f"v_add_f32 v{PS(par, qb)}, v{PS(par, qb)}, v{e}"))
        if r & 1:
            u, i = r >> 3, (r & 7) >> 1
            ops.append(("valu", f"v_cvt_pk_bf16_f32 v{P(par, qb, u) + i}, v{ep}, v{e}"))
    E(0)
    for k in range(1, 32):
        E(k)
        cons(k - 1)
    ops.append(("valu", "s_nop 0"))
    cons(31)
    return ops

def gen_step(a, s, do_qk=True, do_pv=True, do_sm=True, do_dma=True, do_kread=True, do_vread=True,
             vm=8, add_prev_ps=True, tag="", opt=None):
    par = s & 1
    rslot = (s + 2) % 4
    wslot = (s + 1) % 4
    mf = []
    for g in range(16):
        ds, qb = g >> 1, g & 1
        if do_qk:
            d = S(par ^ 1, qb)
            c = CI(qb) if ds == 0 else d
            mf.append(f"v_mfma_f32_32x32x16_bf16 v[{d}:{d+15}], a[{Kf(ds)}:{Kf(ds)+3}], a[{Qf(qb,ds)}:{Qf(qb,ds)+3}], v[{c}:{c+15}]")
        else:
            mf.append(None)
    for g in range(16):
        u, db, qb = g >> 3, (g >> 1) & 3, g & 1
        if do_pv:
            o = O(qb, db); vf = Vf(u * 4 + db); p = P(par ^ 1, qb, u)
            mf.append(f"v_mfma_f32_32x32x16_bf16 a[{o}:{o+15}], a[{vf}:{vf+3}], v[{p}:{p+3}], a[{o}:{o+15}]")
        else:
            mf.append(None)
    pinned = [[] for _ in range(32)]
    if add_prev_ps:
        pinned[0].append(("valu", f"v_add_f32 v{LT(0)}, v{LT(0)}, v{PS(par^1,0)}"))
        pinned[1].append(("valu", f"v_add_f32 v{LT(1)}, v{LT(1)}, v{PS(par^1,1)}"))
    if do_vread:
        for i in range(8):
            pinned[1 + i + (i >> 1)].append(("ds", f"ds_read_b128 a[{Vf(i)}:{Vf(i)+3}], v{V_LDS} offset:{32768 + rslot*8192 + i*1024}"))
    if do_kread:
        for i in range(8):
            pinned[16 + 1 + i + (i >> 1)].append(("ds", f"ds_read_b128 a[{Kf(i)}:{Kf(i)+3}], v{V_LDS} offset:{rslot*8192 + i*1024}"))
    if do_dma:
        pinned[2].append(("salu", f"s_add_u32 m0, s{S_M0B}, {wslot*8192}"))
        for i, g in enumerate((3, 9, 19, 25)):
            pinned[g].append(("dma", f"buffer_load_dwordx4 v{V_DMA}, s[24:27], s{S_DOFF} offen offset:{i*1024} lds"))
        pinned[27].append(("salu", f"s_add_u32 s{S_DOFF}, s{S_DOFF}, 8192"))
    if do_pv and do_vread:
        pinned[15].append(("salu", "s_waitcnt lgkmcnt(0)"))
    sm = sm_stream(par) if do_sm else []
    total = sum(COST[k] for k, _ in sm)
    LAST = 29
    pin_cost = [sum(COST[k] for k, _ in pinned[g]) for g in range(32)]
    per_gap = (total + sum(pin_cost[:LAST + 1])) / (LAST + 1)
    done = 0.0; cum_target = 0.0
    si = 0
    for g in range(32):
        if mf[g]:
            a(mf[g])
        for k, t in pinned[g]:
            a(t)
        done += pin_cost[g]
        cum_target += per_gap
        while si < len(sm) and (g >= LAST or done + COST[sm[si][0]] / 2 <= cum_target):
            a(sm[si][1]); done += COST[sm[si][0]]; si += 1
        if g == 30 and do_sm:
            a(f"v_max_f32 v{V_T0}, v{PS(par,0)}, v{PS(par,1)}")
            a(f"v_cmp_lt_f32 vcc, s{S_THR}, v{V_T0}")
    assert si == len(sm)
    if do_sm:
        a(f"s_cbranch_vccnz L_rare_{tag}")
        a.label(f"L_join_{tag}")

def gen_barrier(a, vm):
    a(f"s_waitcnt vmcnt({vm}) lgkmcnt(0)")
    a("s_barrier")

def gen_rare(a, par):
    a.label(f"L_rare_sub{par}")
    a("s_nop 15")
    a("s_nop 15")
    for qb in range(2):
        sb = S(par, qb); m = V_T0; t = V_T0 + 1; f = V_T0 + 2
        a(f"v_max3_f32 v{m}, v{sb}, v{sb+1}, v{sb+2}")
        for r in range(3, 15, 2):
            a(f"v_max3_f32 v{m}, v{m}, v{sb+r}, v{sb+r+1}")
        a(f"v_max_f32 v{m}, v{m}, v{sb+15}")
        a(f"v_mov_b32 v{t}, v{m}")
        a("s_nop 1")
        a(f"v_permlane32_swap_b32 v{m}, v{t}")
        a("s_nop 1")
        a(f"v_max3_f32 v{m}, v{m}, v{t}, 0")
        a(f"v_exp_f32 v{f}, -v{m}") if False else a(f"v_exp_f32_e64 v{f}, -v{m}")
        for r in range(16):
            a(f"v_sub_f32 v{sb+r}, v{sb+r}, v{m}")
            a(f"v_sub_f32 v{S(par^1,qb)+r}, v{S(par^1,qb)+r}, v{m}")
            a(f"v_sub_f32 v{CI(qb)+r}, v{CI(qb)+r}, v{m}")
        a(f"v_mul_f32 v{LT(qb)}, v{LT(qb)}, v{f}")
        for db in range(4):
            for r in range(16):
                a(f"v_accvgpr_read_b32 v{t}, a{O(qb,db)+r}")
                a(f"v_mul_f32 v{t}, v{t}, v{f}")
                a(f"v_accvgpr_write_b32 a{O(qb,db)+r}, v{t}")
    for k, t in sm_stream(par):
        a(t)
    a("s_nop 1")
    a("s_setpc_b64 s[56:57]")

def gen_attn(a, opt):
    a.raw(".p2align 8")
    a.raw(".globl attn_kernel")
    a.raw(".type attn_kernel,@function")
    a.label("attn_kernel")
    a("s_cmp_ge_u32 s2, 256")
    a("s_cbranch_scc1 L_attn_done")
    a("s_load_dwordx2 s[4:5], s[0:1], 0")
    a("s_load_dwordx4 s[28:31], s[0:1], 56")
    a("s_load_dwordx2 s[6:7], s[0:1], 88")
    a("s_load_dwordx2 s[32:33], s[0:1], 104")
    a("s_and_b32 s34, s2, 7")
    a("s_lshl_b32 s34, s34, 2")
    a("s_bfe_u32 s35, s2, 0x20003")
    a("s_add_u32 s34, s34, s35")
    a("s_lshr_b32 s35, s2, 5")
    a("v_lshrrev_b32 v3, 6, v0")
    a("v_and_b32 v4, 63, v0")
    a("v_readfirstlane_b32 s36, v3")
    a(f"v_lshlrev_b32 v{V_LDS}, 4, v4")
    a("v_and_b32 v5, 31, v0")
    a("v_bfe_u32 v6, v0, 5, 1")
    a("s_lshl_b32 s37, s35, 8")
    a("v_lshl_add_u32 v7, v3, 6, v5")
    a("v_add_u32 v7, s37, v7")
    a("v_lshlrev_b32 v24, 8, v7")
    a("v_lshl_add_u32 v24, v6, 6, v24")
    a("s_lshl_b32 s38, s34, 19")
    a("v_add_u32 v25, s38, v24")
    a("s_and_b32 s39, s36, 1")
    a("s_lshl_b32 s39, s39, 12")
    a("s_lshr_b32 s40, s36, 1")
    a(f"s_mul_i32 s41, s40, {(16<<20) - 3*8192:#x}")
    a("s_add_u32 s41, s41, s39")
    a("s_add_u32 s41, s41, s38")
    a(f"v_add_u32 v{V_DMA}, s41, v{V_LDS}")
    a("s_lshl_b32 s42, s40, 15")
    a(f"s_add_u32 s{S_M0B}, s42, s39")
    a(f"s_mov_b32 s{S_DOFF}, 0")
    a(f"s_mov_b32 s{S_THR}, {f32bits(2.0**20):#x}")
    a("s_mov_b32 s43, 8192")
    a("s_mov_b32 s44, 0x05040100")
    a("s_mov_b32 s45, 0x07060302")
    a("s_waitcnt lgkmcnt(0)")
    srd(a, 8, 4, 16 << 20)
    srd(a, 12, 28, 512 << 10)
    srd(a, 16, 30, 512 << 10)
    srd(a, 20, 6, 16 << 20)
    srd(a, 24, 32, 32 << 20)
    for qb in range(2):
        base = 32 + qb * 96
        so = "s43" if qb else "0"
        for t, (sr, vo) in enumerate(((8, 25), (12, 24), (16, 24))):
            for hi in range(2):
                for i in range(4):
                    r = base + t * 32 + hi * 16 + i * 4
                    a(f"buffer_load_dwordx4 v[{r}:{r+3}], v{vo}, s[{sr}:{sr+3}], {so} offen offset:{hi*128 + i*16}")
    def dma(slot):
        a(f"s_add_u32 m0, s{S_M0B}, {slot*8192}")
        a("s_nop 0")
        for i in range(4):
            a(f"buffer_load_dwordx4 v{V_DMA}, s[24:27], s{S_DOFF} offen offset:{i*1024} lds")
        a(f"s_add_u32 s{S_DOFF}, s{S_DOFF}, 8192")
    dma(0); dma(1); dma(2)
    def rope(qb):
        base = 32 + qb * 96
        for k in range(16):
            q1 = base + k; q2 = base + 16 + k
            cL = base + 32 + k; cH = base + 48 + k
            sL = base + 64 + k; sH = base + 80 + k
            ds = k >> 1; w = k & 1
            t = 8
            a(f"v_perm_b32 v{t}, v{q2}, v{q1}, s44")
            a(f"v_perm_b32 v{t+1}, v{q2}, v{q1}, s45")
            a(f"v_perm_b32 v{t+2}, v{sL}, v{cL}, s44")
            a(f"v_perm_b32 v{t+3}, v{sL}, v{cL}, s45")
            a(f"v_perm_b32 v{t+4}, v{cH}, v{sH}, s44")
            a(f"v_perm_b32 v{t+5}, v{cH}, v{sH}, s45")
            a(f"v_dot2_f32_bf16 v{t+6}, v{t}, v{t+2}, 0 neg_hi:[1,0,0]")
            a(f"v_dot2_f32_bf16 v{t+7}, v{t+1}, v{t+3}, 0 neg_hi:[1,0,0]")
            a(f"v_dot2_f32_bf16 v{t+8}, v{t}, v{t+4}, 0")
            a(f"v_dot2_f32_bf16 v{t+9}, v{t+1}, v{t+5}, 0")
            a("s_nop 2")
            a(f"v_cvt_pk_bf16_f32 v{t+10}, v{t+6}, v{t+7}")
            a(f"v_cvt_pk_bf16_f32 v{t+11}, v{t+8}, v{t+9}")
            a(f"v_accvgpr_write_b32 a{Qf(qb,ds)+w}, v{t+10}")
            a(f"v_accvgpr_write_b32 a{Qf(qb,ds)+2+w}, v{t+11}")
    a("s_waitcnt vmcnt(36)")
    rope(0)
    dma(3)
    a("s_waitcnt vmcnt(16)")
    rope(1)
    for r in range(128):
        a(f"v_accvgpr_write_b32 a{r}, 0")
    for r in range(32):
        a(f"v_mov_b32 v{CI(0)+r}, 0")
    a(f"v_mov_b32 v{LT(0)}, 0")
    a(f"v_mov_b32 v{LT(1)}, 0")
    a("s_waitcnt vmcnt(8)")
    a("s_barrier")
    for i in range(8):
        a(f"ds_read_b128 a[{Kf(i)}:{Kf(i)+3}], v{V_LDS} offset:{i*1024}")
    a("s_waitcnt lgkmcnt(0)")
    for g in range(16):
        ds, qb = g >> 1, g & 1
        d = S(0, qb); c = CI(qb) if ds == 0 else d
        a(f"v_mfma_f32_32x32x16_bf16 v[{d}:{d+15}], a[{Kf(ds)}:{Kf(ds)+3}], a[{Qf(qb,ds)}:{Qf(qb,ds)+3}], v[{c}:{c+15}]")
    a("s_barrier")
    for i in range(8):
        a(f"ds_read_b128 a[{Kf(i)}:{Kf(i)+3}], v{V_LDS} offset:{8192 + i*1024}")
    dma(0)
    a("s_nop 7")
    for qb in range(2):
        sb = S(0, qb); m = V_T0; t = V_T0 + 1
        a(f"v_max3_f32 v{m}, v{sb}, v{sb+1}, v{sb+2}")
        for r in range(3, 15, 2):
            a(f"v_max3_f32 v{m}, v{m}, v{sb+r}, v{sb+r+1}")
        a(f"v_max_f32 v{m}, v{m}, v{sb+15}")
        a(f"v_mov_b32 v{t}, v{m}")
        a("s_nop 1")
        a(f"v_permlane32_swap_b32 v{m}, v{t}")
        a("s_nop 1")
        a(f"v_max_f32 v{m}, v{m}, v{t}")
        for r in range(16):
            a(f"v_sub_f32 v{sb+r}, v{sb+r}, v{m}")
            a(f"v_sub_f32 v{CI(qb)+r}, 0, v{m}")
    sites = []
    gen_barrier(a, 8)
    gen_step(a, 0, do_pv=False, do_vread=False, add_prev_ps=False, tag="s0", opt=opt); sites.append(("s0", 0))
    a(f"s_mov_b32 s{S_LOOP}, 15")
    a.raw(".p2align 6")
    a.label("L_loop")
    for s in (1, 2, 3, 4):
        gen_barrier(a, 8)
        gen_step(a, s, tag=f"l{s}", opt=opt); sites.append((f"l{s}", s & 1))
    a(f"s_sub_u32 s{S_LOOP}, s{S_LOOP}, 1")
    a(f"s_cmp_lg_u32 s{S_LOOP}, 0")
    a("s_cbranch_scc1 L_loop")
    gen_barrier(a, 8)
    gen_step(a, 61, tag="s61", opt=opt); sites.append(("s61", 1))
    gen_barrier(a, 8)
    gen_step(a, 62, do_dma=False, do_kread=False, tag="s62", opt=opt); sites.append(("s62", 0))
    gen_barrier(a, 4)
    gen_step(a, 63, do_qk=False, do_dma=False, do_kread=False, tag="s63", opt=opt); sites.append(("s63", 1))
    gen_barrier(a, 0)
    gen_step(a, 64, do_qk=False, do_sm=False, do_dma=False, do_kread=False, tag="s64", opt=opt)
    a("s_nop 15")
    for qb in range(2):
        l = LT(qb); t = V_T0 + qb
        a(f"v_mov_b32 v{t}, v{l}")
        a("s_nop 1")
        a(f"v_permlane32_swap_b32 v{l}, v{t}")
        a("s_nop 1")
        a(f"v_add_f32 v{l}, v{l}, v{t}")
        a(f"v_rcp_f32 v{l}, v{l}")
    a("v_lshlrev_b32 v24, 8, v7")
    a("v_lshl_add_u32 v24, v6, 3, v24")
    a("v_add_u32 v24, s38, v24")
    for qb in range(2):
        so = "s43" if qb else "0"
        for db in range(4):
            for g in range(4):
                t = 32 + ((db * 4 + g) & 7) * 8
                for e in range(4):
                    a(f"v_accvgpr_read_b32 v{t+e}, a{O(qb,db)+g*4+e}")
                for e in range(4):
                    a(f"v_mul_f32 v{t+e}, v{t+e}, v{LT(qb)}")
                a(f"v_cvt_pk_bf16_f32 v{t+4}, v{t}, v{t+1}")
                a(f"v_cvt_pk_bf16_f32 v{t+5}, v{t+2}, v{t+3}")
                a(f"buffer_store_dwordx2 v[{t+4}:{t+5}], v24, s[20:23], {so} offen offset:{db*64+g*16}")
    a.label("L_attn_done")
    a("s_endpgm")
    for tag, par in sites:
        a.label(f"L_rare_{tag}")
        a(f"s_call_b64 s[56:57], L_rare_sub{par}")
        a(f"s_branch L_join_{tag}")
    gen_rare(a, 0)
    gen_rare(a, 1)

def kd(a, name, vgpr, accum, sgpr):
    a.raw(".p2align 6")
    a.raw(f".amdhsa_kernel {name}")
    a.raw(f"  .amdhsa_next_free_vgpr {vgpr}")
    a.raw(f"  .amdhsa_next_free_sgpr {sgpr}")
    a.raw(f"  .amdhsa_accum_offset {accum}")
    a.raw("  .amdhsa_group_segment_fixed_size 0")
    a.raw("  .amdhsa_kernarg_size 112")
    a.raw("  .amdhsa_user_sgpr_count 2")
    a.raw("  .amdhsa_user_sgpr_kernarg_segment_ptr 1")
    a.raw("  .amdhsa_system_sgpr_workgroup_id_x 1")
    a.raw(".end_amdhsa_kernel")

def main(out, opt):
    a = Asm()
    hdr = open(f"cdna_kernels/{NAME}.s.ref").read().splitlines()
    for line in hdr:
        if line.startswith(";") and "@launch" not in line:
            a.raw(line)
    a.raw("; @launch kernel=prep_kernel grid=(1536,1,1) block=(256,1,1) lds=0")
    a.raw("; @launch kernel=attn_kernel grid=(256,1,1) block=(256,1,1) lds=65536")
    a.raw('.amdgcn_target "amdgcn-amd-amdhsa--gfx950"')
    a.raw(".text")
    gen_prep(a)
    gen_attn(a, opt)
    a.raw('.section .rodata,"a"')
    kd(a, "prep_kernel", 160, 160, 64)
    kd(a, "attn_kernel", 512, 256, 64)
    open(out, "w").write(a.text())

if __name__ == "__main__":
    out = sys.argv[1] if len(sys.argv) > 1 else f"cdna_kernels/{NAME}.s"
    opt = dict(kv.split("=") for kv in sys.argv[2:])
    main(out, opt)
```

```python
import sys, math, struct

NAME = "standalone__kv_cache_quant_pre_rope_vs_post_rope__prompt"
KNAME = NAME + "_kernel"

def f32bits(x):
    return struct.unpack("<I", struct.pack("<f", x))[0]

C_SCALE = math.log2(math.e) / math.sqrt(128.0)

class Asm:
    def __init__(self):
        self.lines = []
        self.vm = []
    def __call__(self, s):
        self.lines.append("    " + s)
    def label(self, s):
        self.lines.append(s + ":")
    def raw(self, s):
        self.lines.append(s)
    def vmem(self, s, tag):
        self.lines.append("    " + s)
        self.vm.append(tag)
    def vm_after(self, tag):
        for i in range(len(self.vm) - 1, -1, -1):
            if self.vm[i] == tag:
                return len(self.vm) - 1 - i
        raise KeyError(tag)
    def wait_vm(self, *tags, lgkm=False):
        n = min(self.vm_after(t) for t in tags)
        assert n <= 63, n
        self(f"s_waitcnt vmcnt({n})" + (" lgkmcnt(0)" if lgkm else ""))
    def text(self):
        return "\n".join(self.lines) + "\n"

def srd(a, d, ptr, nbytes):
    a(f"s_mov_b32 s{d}, s{ptr}")
    a(f"s_and_b32 s{d+1}, s{ptr+1}, 0xffff")
    a(f"s_mov_b32 s{d+2}, {nbytes:#x}")
    a(f"s_mov_b32 s{d+3}, 0x00020000")

R_Q, R_QC, R_QS, R_OUT, R_WS, R_QK, R_KSC, R_KZ, R_KC, R_KS, R_QV, R_VSC, R_VZ, R_DBG = [8 + 4 * i for i in range(14)]
def sr(r): return f"s[{r}:{r+3}]"
S_ROT = 64
S_THR, S_M0B, S_LOOP, S_INCK, S_INCV = 72, 73, 74, 75, 76
S_PQ, S_PQ4, S_PC, S_PS = 77, 78, 79, 80
S_FBIT, S_FDW = 81, 82
S_POFF, S_PSH = 83, 84
S_CSC, S_HI = 85, 86
S_RET = 88
S_HEADOFF = 90
S_T0 = 91
S_WAVE = 96
S_LQ = 97
S_8K = 98
def O(qb, db):  return (qb * 4 + db) * 16
def Qf(qb, ds): return 128 + (qb * 8 + ds) * 4
def Kf(ds):     return 192 + ds * 4
def Vf(i):      return 224 + i * 4
V_LDS, V_DMA = 1, 2
V_ET = 8
def PS(par, qb): return 12 + par * 2 + qb
def LT(qb): return 16 + qb
V_T0 = 18
V_KQ, V_KCS, V_KSC, V_KST, V_VQ, V_VSC, V_VST, V_SELK, V_SELV, V_FLAG = range(22, 32)
V_POLL = 3
V_FB = 4
def S(par, qb): return 64 + par * 32 + qb * 16
def CI(qb): return 128 + qb * 16
def P(par, qb, u): return 160 + par * 16 + qb * 8 + u * 4

class PSet:
    def __init__(self, X, CS, KSC, KT, VD, VS):
        self.X, self.CS, self.KSC, self.KT, self.VD, self.VS = X, CS, KSC, KT, VD, VS
SETA = PSet(32, 48, 192, 196, 208, 224)
SETB = PSet(64, 80, 96, 100, 112, 128)

COST = {"exp": 8, "valu": 4, "ds": 4, "vmem": 12, "salu": 4, "wait": 4}

def k_loads(ps, tag):
    ops = []
    for hi in range(2):
        for k in range(2):
            r = ps.X + hi * 8 + k * 4
            ops.append(("vmem", f"buffer_load_dwordx4 v[{r}:{r+3}], v{V_KQ}, {sr(R_QK)}, s{S_PQ} offen offset:{hi*256+k*16}", tag))
    ops.append(("vmem", f"buffer_load_dwordx2 v[{ps.KSC}:{ps.KSC+1}], v{V_KSC}, {sr(R_KSC)}, s{S_PS} offen", tag))
    ops.append(("vmem", f"buffer_load_dwordx2 v[{ps.KSC+2}:{ps.KSC+3}], v{V_KSC}, {sr(R_KZ)}, s{S_PS} offen", tag))
    for t, rr in ((0, R_KC), (1, R_KS)):
        for hi in range(2):
            r = ps.CS + t * 8 + hi * 4
            ops.append(("vmem", f"buffer_load_dwordx4 v[{r}:{r+3}], v{V_KCS}, {sr(rr)}, s{S_PC} offen offset:{hi*128}", tag))
    return ops

def k_compute(ps, ltag, stag):
    ops = [("wait", None, ltag)]
    v = lambda s: ops.append(("valu", s, None))
    k = ps.KSC
    for i in range(4):
        v(f"v_perm_b32 v{k+i}, v{k+i}, v{k+i}, v{V_SELK}")
    v(f"v_mul_f32 v{k}, s{S_CSC}, v{k}")
    v(f"v_mul_f32 v{k+1}, s{S_CSC}, v{k+1}")
    v(f"v_mul_f32_e64 v{k+2}, -v{k+2}, v{k}")
    v(f"v_mul_f32_e64 v{k+3}, -v{k+3}, v{k+1}")
    T = ps.KT
    for piece in range(2):
        for e4 in range(4):
            e = piece * 4 + e4
            x1 = ps.X + e; x2 = ps.X + 8 + e
            v(f"v_cvt_f32_i32 v{x1}, v{x1}")
            v(f"v_cvt_f32_i32 v{x2}, v{x2}")
            v(f"v_fma_f32 v{x1}, v{x1}, v{k}, v{k+2}")
            v(f"v_fma_f32 v{x2}, v{x2}, v{k+1}, v{k+3}")
            for t in range(4):
                src = ps.CS + t * 4 + (e >> 1)
                if e & 1: v(f"v_and_b32 v{T+8+t}, s{S_HI}, v{src}")
                else:     v(f"v_lshlrev_b32 v{T+8+t}, 16, v{src}")
            o1 = T + e4; o2 = T + 4 + e4
            v(f"v_mul_f32 v{o1}, v{x1}, v{T+8}")
            v(f"v_mul_f32 v{o2}, v{x2}, v{T+9}")
            v(f"v_fma_f32 v{o1}, -v{x2}, v{T+10}, v{o1}")
            v(f"v_fma_f32 v{o2}, v{x1}, v{T+11}, v{o2}")
        D = ps.X + piece * 4
        v(f"v_cvt_pk_bf16_f32 v{D}, v{T}, v{T+1}")
        v(f"v_cvt_pk_bf16_f32 v{D+1}, v{T+2}, v{T+3}")
        v(f"v_cvt_pk_bf16_f32 v{D+2}, v{T+4}, v{T+5}")
        v(f"v_cvt_pk_bf16_f32 v{D+3}, v{T+6}, v{T+7}")
        ops.append(("vmem", f"buffer_store_dwordx4 v[{D}:{D+3}], v{V_KST}, {sr(R_WS)}, s{S_PC} offen offset:{piece*1024} sc1", stag))
    return ops

def v_loads(ps, tag):
    ops = []
    for jj in range(2):
        for rr in range(4):
            r = ps.VD + (4 * jj + rr) * 2
            so = S_PQ4 if jj else S_PQ
            ops.append(("vmem", f"buffer_load_dwordx2 v[{r}:{r+1}], v{V_VQ}, {sr(R_QV)}, s{so} offen offset:{rr*512}", tag))
    for t, rr_ in ((0, R_VSC), (1, R_VZ)):
        for jj in range(2):
            for half in range(2):
                r = ps.VS + t * 16 + jj * 8 + half * 4
                ops.append(("vmem", f"buffer_load_dwordx4 v[{r}:{r+3}], v{V_VSC}, {sr(rr_)}, s{S_PS} offen offset:{jj*64+half*16}", tag))
    return ops

def v_compute(ps, ltag, stag):
    ops = [("wait", None, ltag)]
    v = lambda s: ops.append(("valu", s, None))
    for k in range(8):
        s_ = ps.VS + 2 * k; z_ = ps.VS + 16 + 2 * k
        v(f"v_perm_b32 v{s_}, v{s_+1}, v{s_}, v{V_SELV}")
        v(f"v_perm_b32 v{z_}, v{z_+1}, v{z_}, v{V_SELV}")
        v(f"v_mul_f32_e64 v{z_}, -v{z_}, v{s_}")
        for e in range(2):
            x = ps.VD + 2 * k + e
            v(f"v_cvt_f32_i32 v{x}, v{x}")
            v(f"v_fma_f32 v{x}, v{x}, v{s_}, v{z_}")
    for e in range(2):
        D = ps.KT + e * 4
        for p in range(4):
            v(f"v_cvt_pk_bf16_f32 v{D+p}, v{ps.VD+4*p+e}, v{ps.VD+4*p+2+e}")
        ops.append(("vmem", f"buffer_store_dwordx4 v[{D}:{D+3}], v{V_VST}, {sr(R_WS)}, s{S_PC} offen offset:{e*16} sc1", stag))
    return ops

def emit(a, op):
    kind, text, tag = op
    if kind == "vmem":
        a.vmem(text, tag)
    elif kind == "wait":
        a.wait_vm(tag)
    else:
        a(text)

def prod_advance():
    return [("salu", f"s_add_u32 s{S_PQ}, s{S_PQ}, 0x20000", None),
            ("salu", f"s_add_u32 s{S_PQ4}, s{S_PQ4}, 0x20000", None),
            ("salu", f"s_add_u32 s{S_PC}, s{S_PC}, 0x10000", None),
            ("salu", f"s_add_u32 s{S_PS}, s{S_PS}, 2048", None)]

def flag_ops(tag):
    return [("valu", f"v_mov_b32 v{V_FB}, s{S_FBIT}", None),
            ("vmem", f"buffer_atomic_or v{V_FB}, v{V_FLAG}, {sr(R_DBG)}, s{S_FDW} offen sc1", tag),
            ("salu", f"s_lshl_b32 s{S_FBIT}, s{S_FBIT}, 8", None),
            ("salu", f"s_cselect_b32 s{S_FBIT}, s{S_FBIT}, s{S_T0+4}", None),
            ("salu", f"s_cselect_b32 s{S_FDW}, s{S_FDW}, 4", None)]

def sm_stream(par):
    ops = []
    def E(k):
        qb, r = k >> 4, k & 15
        ops.append(("exp", f"v_exp_f32 v{V_ET + (k & 3)}, v{S(par, qb) + r}", None))
    def cons(k):
        qb, r = k >> 4, k & 15
        e = V_ET + (k & 3); ep = V_ET + ((k - 1) & 3)
        if r == 0:
            return
        if r == 1:
            ops.append(("valu", f"v_add_f32 v{PS(par, qb)}, v{ep}, v{e}", None))
        else:
            ops.append(("valu", f"v_add_f32 v{PS(par, qb)}, v{PS(par, qb)}, v{e}", None))
        if r & 1:
            u, i = r >> 3, (r & 7) >> 1
            ops.append(("valu", f"v_cvt_pk_bf16_f32 v{P(par, qb, u) + i}, v{ep}, v{e}", None))
    E(0)
    for k in range(1, 32):
        E(k)
        cons(k - 1)
    ops.append(("valu", "s_nop 0", None))
    cons(31)
    return ops

def dma_tag(s): return f"dma{s % 8}"

def gen_step(a, s, tag, do_qk=True, do_pv=True, do_sm=True, do_dma=True, do_kread=True, do_vread=True,
             add_prev_ps=True, pre=(), prod=(), bar_tags=None, rot_inc=True):
    par = s & 1
    i8 = s % 8
    rslot = (s + 2) % 4
    wslot = (s + 1) % 4
    a.wait_vm(*bar_tags, lgkm=True)
    a("s_barrier")
    mf = []
    for g in range(16):
        ds, qb = g >> 1, g & 1
        if do_qk:
            d = S(par ^ 1, qb)
            c = CI(qb) if ds == 0 else d
            mf.append(f"v_mfma_f32_32x32x16_bf16 v[{d}:{d+15}], a[{Kf(ds)}:{Kf(ds)+3}], a[{Qf(qb,ds)}:{Qf(qb,ds)+3}], v[{c}:{c+15}]")
        else:
            mf.append(None)
    for g in range(16):
        u, db, qb = g >> 3, (g >> 1) & 3, g & 1
        if do_pv:
            o = O(qb, db); vf = Vf(u * 4 + db); p = P(par ^ 1, qb, u)
            mf.append(f"v_mfma_f32_32x32x16_bf16 a[{o}:{o+15}], a[{vf}:{vf+3}], v[{p}:{p+3}], a[{o}:{o+15}]")
        else:
            mf.append(None)
    pinned = [[] for _ in range(32)]
    for op in pre:
        pinned[0].append(op)
    if add_prev_ps:
        pinned[0].append(("valu", f"v_add_f32 v{LT(0)}, v{LT(0)}, v{PS(par^1,0)}", None))
        pinned[1].append(("valu", f"v_add_f32 v{LT(1)}, v{LT(1)}, v{PS(par^1,1)}", None))
    if do_vread:
        for i in range(8):
            pinned[1 + i + (i >> 1)].append(("ds", f"ds_read_b128 a[{Vf(i)}:{Vf(i)+3}], v{V_LDS} offset:{32768 + rslot*8192 + i*1024}", None))
    if do_kread:
        for i in range(8):
            pinned[16 + 1 + i + (i >> 1)].append(("ds", f"ds_read_b128 a[{Kf(i)}:{Kf(i)+3}], v{V_LDS} offset:{rslot*8192 + i*1024}", None))
    if do_dma:
        if rot_inc and i8 == 3:
            pinned[1].append(("valu", f"v_add_u32 v{V_DMA}, s{S_INCK}, v{V_DMA}", None))
        if rot_inc and i8 == 6:
            pinned[1].append(("valu", f"v_add_u32 v{V_DMA}, s{S_INCV}, v{V_DMA}", None))
        pinned[2].append(("salu", f"s_add_u32 m0, s{S_M0B}, {wslot*8192}", None))
        for i, g in enumerate((3, 9, 19, 25)):
            pinned[g].append(("vmem", f"buffer_load_dwordx4 v{V_DMA}, {sr(R_WS)}, s{S_ROT+i8} offen offset:{i*1024} sc1 lds", dma_tag(s)))
    if do_pv and do_vread:
        pinned[15].append(("salu", "s_waitcnt lgkmcnt(0)", None))
    sm = sm_stream(par) if do_sm else []
    prod = list(prod)
    LAST = 29
    cost = lambda ops: sum(COST[o[0]] for o in ops)
    tsm, tpr = cost(sm), cost(prod)
    pin_cost = [cost(pinned[g]) for g in range(32)]
    per_gap = (tsm + tpr + sum(pin_cost[:LAST + 1])) / (LAST + 1)
    done = 0.0; cum = 0.0
    si = pi = 0; dsm = dpr = 0.0
    for g in range(32):
        if mf[g]:
            a(mf[g])
        for op in pinned[g]:
            emit(a, op)
        done += pin_cost[g]
        cum += per_gap
        while si < len(sm) or pi < len(prod):
            fs = dsm / tsm if si < len(sm) else 2.0
            fp = dpr / tpr if pi < len(prod) else 2.0
            if fs <= fp: op = sm[si]
            else: op = prod[pi]
            c = COST[op[0]]
            if not (g >= LAST or done + c / 2 <= cum):
                break
            emit(a, op); done += c
            if fs <= fp: si += 1; dsm += c
            else: pi += 1; dpr += c
        if g == 30 and do_sm:
            a(f"v_max_f32 v{V_T0}, v{PS(par,0)}, v{PS(par,1)}")
            a(f"v_cmp_lt_f32 vcc, s{S_THR}, v{V_T0}")
    assert si == len(sm) and pi == len(prod)
    if do_sm:
        a(f"s_cbranch_vccnz L_rare_{tag}")
        a.label(f"L_join_{tag}")
        SITES.append((tag, par))

SITES = []
SPINS = []

def poll_issue():
    return [("vmem", f"buffer_load_dword v{V_POLL}, off, {sr(R_DBG)}, s{S_POFF} sc1", "poll")]

def poll_check(tag):
    SPINS.append(tag)
    return [("valu", f"v_readfirstlane_b32 s{S_T0}, v{V_POLL}", None),
            ("salu", f"s_lshr_b32 s{S_T0}, s{S_T0}, s{S_PSH}", None),
            ("salu", f"s_and_b32 s{S_T0}, s{S_T0}, 0xff", None),
            ("salu", f"s_cmp_eq_u32 s{S_T0}, 0xff", None),
            ("salu", f"s_cbranch_scc0 L_spin_{tag}", None),
            ("label", f"L_spinret_{tag}", None),
            ("salu", f"s_add_u32 s{S_PSH}, s{S_PSH}, 8", None),
            ("salu", f"s_and_b32 s{S_PSH}, s{S_PSH}, 31", None),
            ("salu", f"s_cselect_b32 s{S_T0}, 0, 4", None),
            ("salu", f"s_add_u32 s{S_POFF}, s{S_POFF}, s{S_T0}", None)]
COST["label"] = 0
_emit0 = emit
def emit(a, op):
    if op[0] == "label":
        a.label(op[1])
    else:
        _emit0(a, op)

def gen_spin(a, tag):
    a.label(f"L_spin_{tag}")
    a(f"s_mov_b32 s{S_T0+1}, 0x4000")
    a.label(f"L_spinl_{tag}")
    a(f"buffer_load_dword v{V_POLL}, off, {sr(R_DBG)}, s{S_POFF} sc1")
    a("s_waitcnt vmcnt(0)")
    a(f"v_readfirstlane_b32 s{S_T0}, v{V_POLL}")
    a(f"s_lshr_b32 s{S_T0}, s{S_T0}, s{S_PSH}")
    a(f"s_and_b32 s{S_T0}, s{S_T0}, 0xff")
    a(f"s_cmp_eq_u32 s{S_T0}, 0xff")
    a(f"s_cbranch_scc1 L_spinret_{tag}")
    a("s_sleep 1")
    a(f"s_sub_u32 s{S_T0+1}, s{S_T0+1}, 1")
    a(f"s_cmp_lg_u32 s{S_T0+1}, 0")
    a(f"s_cbranch_scc1 L_spinl_{tag}")
    a(f"s_branch L_spinret_{tag}")

def gen_round(a, r, tagp, produce=True, last_kload=True, first=False, final=False):
    kc = k_compute(SETA, "kld", "kst") if produce else []
    vc = v_compute(SETA, "vld", "vst") if produce else []
    q = (len(kc) + 3) // 4
    h = (len(vc) + 1) // 2
    for i in range(8):
        s = 8 * r + i
        pre = []; prod = []
        bar = [dma_tag(s - 3)]
        kw = {}
        if produce:
            if i < 4: prod += kc[i * q:(i + 1) * q]
            if i == 1: prod = prod[:len(prod) // 2] + v_loads(SETA, "vld") + prod[len(prod) // 2:]
            if i in (4, 5): prod += vc[(i - 4) * h:(i - 3) * h]
            if i == 6:
                prod += prod_advance()
                if last_kload:
                    prod += [("salu", f"s_cmp_lt_u32 s{S_PS}, {8*2048}\n    s_cselect_b32 s{S_PQ}, s{S_PQ}, 0x7ff00000", None)]
                prod += k_loads(SETA, "kld")
            if i == 7:
                bar.append("vst")
                pre += flag_ops("flag")
        if first and i == 0:
            bar.append("r1st")
            pre += flag_ops("flag")
            kw.update(do_pv=False, do_vread=False, add_prev_ps=False)
        if not final:
            if i == 2:
                pre += poll_issue()
            if i == 3:
                bar.append("poll")
                pre += poll_check(f"{tagp}")
        else:
            kw.update(rot_inc=False)
            if i == 6: kw.update(do_dma=False, do_kread=False)
            if i == 7: kw.update(do_qk=False, do_dma=False, do_kread=False)
        gen_step(a, s, f"{tagp}_{i}", pre=pre, prod=prod, bar_tags=bar, **kw)

def gen_rare(a, par):
    a.label(f"L_rare_sub{par}")
    a("s_nop 15")
    a("s_nop 15")
    for qb in range(2):
        sb = S(par, qb); m = V_T0; t = V_T0 + 1; f = V_T0 + 2
        a(f"v_max3_f32 v{m}, v{sb}, v{sb+1}, v{sb+2}")
        for r in range(3, 15, 2):
            a(f"v_max3_f32 v{m}, v{m}, v{sb+r}, v{sb+r+1}")
        a(f"v_max_f32 v{m}, v{m}, v{sb+15}")
        a(f"v_mov_b32 v{t}, v{m}")
        a("s_nop 1")
        a(f"v_permlane32_swap_b32 v{m}, v{t}")
        a("s_nop 1")
        a(f"v_max3_f32 v{m}, v{m}, v{t}, 0")
        a(f"v_exp_f32_e64 v{f}, -v{m}")
        for r in range(16):
            a(f"v_sub_f32 v{sb+r}, v{sb+r}, v{m}")
            a(f"v_sub_f32 v{S(par^1,qb)+r}, v{S(par^1,qb)+r}, v{m}")
            a(f"v_sub_f32 v{CI(qb)+r}, v{CI(qb)+r}, v{m}")
        a(f"v_mul_f32 v{LT(qb)}, v{LT(qb)}, v{f}")
        for db in range(4):
            for r in range(16):
                a(f"v_accvgpr_read_b32 v{t}, a{O(qb,db)+r}")
                a(f"v_mul_f32 v{t}, v{t}, v{f}")
                a(f"v_accvgpr_write_b32 a{O(qb,db)+r}, v{t}")
    for op in sm_stream(par):
        a(op[1])
    a("s_nop 1")
    a(f"s_setpc_b64 s[{S_RET}:{S_RET+1}]")

def stamp(a, opt, idx):
    if opt.get("stamp"):
        a("s_memtime s[100:101]")
        a("s_waitcnt lgkmcnt(0)")
        a(f"v_writelane_b32 v5, s100, {idx}")
        a("s_memrealtime s[100:101]")
        a("s_waitcnt lgkmcnt(0)")
        a(f"v_writelane_b32 v6, s100, {idx}")

def gen_kernel(a, opt):
    a.raw(".p2align 8")
    a.raw(f".globl {KNAME}")
    a.raw(f".type {KNAME},@function")
    a.label(KNAME)
    a("s_cmp_ge_u32 s2, 256")
    a("s_cbranch_scc1 L_done")
    a("s_load_dwordx16 s[64:79], s[0:1], 0")
    a("s_load_dwordx8 s[80:87], s[0:1], 64")
    a("s_load_dwordx4 s[88:91], s[0:1], 96")
    stamp(a, opt, 0)
    a("s_and_b32 s3, s2, 7")
    a("s_lshl_b32 s3, s3, 2")
    a("s_bfe_u32 s4, s2, 0x20003")
    a("s_add_u32 s3, s3, s4")
    a("s_lshr_b32 s4, s2, 5")
    a("v_lshrrev_b32 v3, 6, v0")
    a("v_and_b32 v4, 63, v0")
    a(f"v_readfirstlane_b32 s{S_WAVE}, v3")
    a(f"v_lshlrev_b32 v{V_LDS}, 4, v4")
    a("s_waitcnt lgkmcnt(0)")
    MB = 1 << 20
    srd(a, R_Q, 64, 16 * MB); srd(a, R_QK, 66, 32 * MB); srd(a, R_KSC, 68, MB // 2); srd(a, R_KZ, 70, MB // 2)
    srd(a, R_QV, 72, 32 * MB); srd(a, R_VSC, 74, MB // 2); srd(a, R_VZ, 76, MB // 2); srd(a, R_QC, 78, MB // 2)
    srd(a, R_QS, 80, MB // 2); srd(a, R_KC, 82, MB // 2); srd(a, R_KS, 84, MB // 2); srd(a, R_OUT, 86, 16 * MB)
    srd(a, R_DBG, 88, 256); srd(a, R_WS, 90, (128 if opt.get("stamp") else 32) * MB)
    a(f"s_lshl_b32 s{S_HEADOFF}, s3, 19")
    a("s_lshl_b32 s5, s3, 20")
    a("s_lshl_b32 s6, s3, 14")
    a("s_lshl_b32 s7, s4, 5")
    a("v_lshrrev_b32 v7, 3, v0")
    a("v_and_b32 v8, 7, v0")
    a("v_add_u32 v9, s7, v7")
    a(f"v_lshlrev_b32 v{V_KQ}, 9, v9")
    a(f"v_lshl_add_u32 v{V_KQ}, v8, 5, v{V_KQ}")
    a(f"v_add_u32 v{V_KQ}, s5, v{V_KQ}")
    a(f"v_lshlrev_b32 v{V_KCS}, 8, v9")
    a(f"v_lshl_add_u32 v{V_KCS}, v8, 4, v{V_KCS}")
    a(f"v_lshlrev_b32 v{V_KSC}, 3, v9")
    a(f"v_add_u32 v{V_KSC}, s6, v{V_KSC}")
    a("v_and_b32 v10, 3, v8")
    a("v_lshrrev_b32 v11, 2, v8")
    a(f"v_lshlrev_b32 v{V_KST}, 11, v10")
    a(f"v_lshl_add_u32 v{V_KST}, v11, 9, v{V_KST}")
    a(f"v_lshl_add_u32 v{V_KST}, v7, 4, v{V_KST}")
    a(f"s_lshl_b32 s{S_T0}, s4, 13")
    a(f"s_add_u32 s{S_T0}, s{S_T0}, s{S_HEADOFF}")
    a(f"v_add_u32 v{V_KST}, s{S_T0}, v{V_KST}")
    a(f"v_mul_u32_u24 v{V_SELK}, 0x20200, v11")
    a(f"v_lshlrev_b32 v{V_SELK}, 8, v{V_SELK}")
    a(f"v_add_u32 v{V_SELK}, 0x01000c0c, v{V_SELK}")
    a("v_lshrrev_b32 v10, 1, v3")
    a("v_and_b32 v11, 1, v3")
    a("v_bfe_u32 v12, v0, 5, 1")
    a("v_and_b32 v13, 31, v0")
    a("v_lshlrev_b32 v14, 4, v10")
    a("v_lshl_add_u32 v14, v12, 2, v14")
    a("v_add_u32 v14, s7, v14")
    a(f"v_lshlrev_b32 v{V_VQ}, 9, v14")
    a(f"v_lshl_add_u32 v{V_VQ}, v11, 8, v{V_VQ}")
    a(f"v_lshl_add_u32 v{V_VQ}, v13, 3, v{V_VQ}")
    a(f"v_add_u32 v{V_VQ}, s5, v{V_VQ}")
    a(f"v_lshlrev_b32 v{V_VSC}, 3, v14")
    a(f"v_add_u32 v{V_VSC}, s6, v{V_VSC}")
    a("v_lshrrev_b32 v15, 4, v13")
    a("v_lshl_add_u32 v15, v11, 1, v15")
    a("v_lshl_add_u32 v16, v10, 2, v15")
    a(f"v_lshlrev_b32 v{V_VST}, 10, v16")
    a(f"v_lshl_add_u32 v{V_VST}, v12, 9, v{V_VST}")
    a("v_and_b32 v16, 15, v13")
    a(f"v_lshl_add_u32 v{V_VST}, v16, 5, v{V_VST}")
    a(f"v_add_u32 v{V_VST}, s{S_T0}, v{V_VST}")
    a(f"v_add_u32 v{V_VST}, 0x1000000, v{V_VST}")
    a(f"v_lshlrev_b32 v{V_SELV}, 17, v15")
    a(f"v_lshl_add_u32 v{V_SELV}, v15, 25, v{V_SELV}")
    a(f"v_add_u32 v{V_SELV}, 0x01000c0c, v{V_SELV}")
    a(f"s_mov_b32 s{S_PQ}, 0"); a(f"s_mov_b32 s{S_PQ4}, 4096"); a(f"s_mov_b32 s{S_PC}, 0"); a(f"s_mov_b32 s{S_PS}, 0")
    a(f"s_mov_b32 s{S_CSC}, {f32bits(C_SCALE):#x}")
    a(f"s_mov_b32 s{S_HI}, 0xffff0000")
    for op in k_loads(SETA, "kld") + v_loads(SETA, "vld"):
        emit(a, op)
    a("v_bfe_u32 v9, v0, 3, 3")
    a("v_lshl_add_u32 v10, v3, 6, v9")
    a(f"s_lshl_b32 s{S_T0+1}, s4, 8")
    a(f"v_add_u32 v10, s{S_T0+1}, v10")
    a("v_lshlrev_b32 v16, 8, v10")
    a("v_lshl_add_u32 v16, v8, 4, v16")
    a(f"v_add_u32 v17, s{S_HEADOFF}, v16")
    QREG = [64, 88, 112, 136, 32, 192, 216, None]
    def qregs(item):
        if item < 7:
            return [QREG[item] + 4 * k for k in range(6)]
        return [56, 60, 240, 244, 248, 252]
    def q_loads(item):
        rg = qregs(item)
        so = "0" if item < 2 else f"s{S_T0+1+(item>>1)-1}"
        k = 0
        for srd_, vo in ((R_Q, 17), (R_QC, 16), (R_QS, 16)):
            for hi in range(2):
                a.vmem(f"buffer_load_dwordx4 v[{rg[k]}:{rg[k]+3}], v{vo}, {sr(srd_)}, {so} offen offset:{(item&1)*2048+hi*128}", f"q{item}")
                k += 1
    a(f"s_mov_b32 s{S_T0+1}, 4096"); a(f"s_mov_b32 s{S_T0+2}, 8192"); a(f"s_mov_b32 s{S_T0+3}, 12288")
    for it in range(4):
        q_loads(it)
    a(f"s_and_b32 s5, s{S_WAVE}, 1")
    a("s_lshl_b32 s5, s5, 12")
    a(f"s_lshr_b32 s6, s{S_WAVE}, 1")
    a("s_lshl_b32 s7, s6, 24")
    a("s_add_u32 s7, s7, s5")
    a(f"s_add_u32 s7, s7, s{S_HEADOFF}")
    a(f"v_add_u32 v{V_DMA}, s7, v{V_LDS}")
    a("s_lshl_b32 s7, s6, 15")
    a(f"s_add_u32 s{S_M0B}, s7, s5")
    a(f"s_lshl_b32 s{S_INCV}, s6, 16")
    a(f"s_sub_u32 s{S_INCK}, 0x10000, s{S_INCV}")
    a("s_mul_i32 s7, s6, 3")
    a("s_sub_u32 s7, 5, s7")
    a("s_add_u32 s7, s7, s4")
    for i in range(8):
        a(f"s_add_u32 s5, s7, {i}")
        a("s_and_b32 s5, s5, 7")
        a(f"s_lshl_b32 s{S_ROT+i}, s5, 13")
    a(f"s_mov_b32 s{S_THR}, {f32bits(2.0**20):#x}")
    a(f"s_lshl_b32 s{S_T0+4}, 1, s4")
    a(f"s_mov_b32 s{S_FBIT}, s{S_T0+4}")
    a(f"s_mov_b32 s{S_FDW}, 0")
    a(f"s_lshl_b32 s{S_POFF}, s3, 3")
    a(f"s_mov_b32 s{S_PSH}, 0")
    a(f"v_mov_b32 v{V_FLAG}, 0x7fffff00")
    a(f"v_mov_b32 v11, s{S_POFF}")
    a("v_cmp_eq_u32 vcc, 0, v0")
    a("s_nop 1")
    a(f"v_cndmask_b32 v{V_FLAG}, v{V_FLAG}, v11, vcc")
    a(f"s_lshl_b32 s{S_LQ}, s{S_WAVE}, 14")
    a(f"s_add_u32 s{S_LQ}, s{S_LQ}, 65536")
    a(f"s_mov_b32 s{S_8K}, 8192")
    a("v_xor_b32 v11, v9, v8")
    a("v_lshlrev_b32 v11, 4, v11")
    a("v_and_b32 v12, 3, v8")
    a("v_lshl_add_u32 v11, v12, 11, v11")
    a("v_lshrrev_b32 v12, 2, v8")
    a("v_lshl_add_u32 v11, v12, 9, v11")
    a(f"v_add_u32 v7, s{S_LQ}, v11")
    a("s_mov_b32 s5, 0x05040100")
    a("s_mov_b32 s6, 0x07060302")
    for op in k_compute(SETA, "kld", "r0st") + v_compute(SETA, "vld", "r0st"):
        emit(a, op)
    stamp(a, opt, 1)
    for it in range(4, 8):
        q_loads(it)
    def rope(item):
        rg = qregs(item)
        a.wait_vm(f"q{item}")
        t = 160
        for k in range(4):
            q1, q2, cL, cH, sL, sH = [rg[n] + k for n in range(6)]
            tt = t + (k & 1) * 10
            a(f"v_perm_b32 v{tt}, v{q2}, v{q1}, s5")
            a(f"v_perm_b32 v{tt+1}, v{q2}, v{q1}, s6")
            a(f"v_perm_b32 v{tt+2}, v{sL}, v{cL}, s5")
            a(f"v_perm_b32 v{tt+3}, v{sL}, v{cL}, s6")
            a(f"v_perm_b32 v{tt+4}, v{cH}, v{sH}, s5")
            a(f"v_perm_b32 v{tt+5}, v{cH}, v{sH}, s6")
            a(f"v_dot2_f32_bf16 v{tt+6}, v{tt}, v{tt+2}, 0 neg_hi:[1,0,0]")
            a(f"v_dot2_f32_bf16 v{tt+7}, v{tt+1}, v{tt+3}, 0 neg_hi:[1,0,0]")
            a(f"v_dot2_f32_bf16 v{tt+8}, v{tt}, v{tt+4}, 0")
            a(f"v_dot2_f32_bf16 v{tt+9}, v{tt+1}, v{tt+5}, 0")
            if k & 1:
                o = 180 + (k >> 1) * 4
                a("s_nop 2")
                a(f"v_cvt_pk_bf16_f32 v{o}, v{t+6}, v{t+7}")
                a(f"v_cvt_pk_bf16_f32 v{o+1}, v{t+16}, v{t+17}")
                a(f"v_cvt_pk_bf16_f32 v{o+2}, v{t+8}, v{t+9}")
                a(f"v_cvt_pk_bf16_f32 v{o+3}, v{t+18}, v{t+19}")
                a(f"ds_write_b128 v7, v[{o}:{o+3}] offset:{(item>>2)*8192 + (k>>1)*1024 + (item&3)*128}")
    for it in range(4):
        rope(it)
    for op in prod_advance():
        emit(a, op)
    for op in k_loads(SETB, "kld1") + v_loads(SETB, "vld1"):
        emit(a, op)
    a.wait_vm("r0st")
    a("s_barrier")
    for op in flag_ops("flag"):
        emit(a, op)
    stamp(a, opt, 2)
    for it in range(4, 8):
        rope(it)
    a("v_and_b32 v4, 63, v0")
    a("v_lshrrev_b32 v8, 5, v4")
    a("v_lshlrev_b32 v8, 2, v8")
    a("v_xor_b32 v8, v8, v4")
    for jx in range(4):
        a(f"v_xor_b32 v{9+jx}, {jx}, v8")
        a(f"v_lshlrev_b32 v{9+jx}, 4, v{9+jx}")
        a(f"v_add_u32 v{9+jx}, s{S_LQ}, v{9+jx}")
    a("s_waitcnt lgkmcnt(0)")
    for qb in range(2):
        for ds in range(8):
            a(f"ds_read_b128 a[{Qf(qb,ds)}:{Qf(qb,ds)+3}], v{9+(ds>>1)} offset:{(qb*8+ds)*1024}")
    stamp(a, opt, 3)
    for op in poll_issue():
        emit(a, op)
    a.wait_vm("poll")
    for op in poll_check("p0"):
        emit(a, op)
    stamp(a, opt, 4)
    def dma(vs):
        a(f"s_add_u32 m0, s{S_M0B}, {((vs+1)%4)*8192}")
        a("s_nop 0")
        for i in range(4):
            a.vmem(f"buffer_load_dwordx4 v{V_DMA}, {sr(R_WS)}, s{S_ROT + vs % 8} offen offset:{i*1024} sc1 lds", dma_tag(vs))
    for vs in (-5, -4, -3, -2):
        dma(vs)
    for op in k_compute(SETB, "kld1", "r1st") + v_compute(SETB, "vld1", "r1st"):
        emit(a, op)
    for op in prod_advance() + k_loads(SETA, "kld"):
        emit(a, op)
    for r in range(128):
        a(f"v_accvgpr_write_b32 a{r}, 0")
    for r in range(32):
        a(f"v_mov_b32 v{CI(0)+r}, 0")
    a(f"v_mov_b32 v{LT(0)}, 0")
    a(f"v_mov_b32 v{LT(1)}, 0")
    stamp(a, opt, 5)
    a.wait_vm(dma_tag(-4), lgkm=True)
    a("s_barrier")
    for i in range(8):
        a(f"ds_read_b128 a[{Kf(i)}:{Kf(i)+3}], v{V_LDS} offset:{i*1024}")
    a("s_waitcnt lgkmcnt(0)")
    for g in range(16):
        ds, qb = g >> 1, g & 1
        d = S(0, qb); c = CI(qb) if ds == 0 else d
        a(f"v_mfma_f32_32x32x16_bf16 v[{d}:{d+15}], a[{Kf(ds)}:{Kf(ds)+3}], a[{Qf(qb,ds)}:{Qf(qb,ds)+3}], v[{c}:{c+15}]")
    a("s_barrier")
    for i in range(8):
        a(f"ds_read_b128 a[{Kf(i)}:{Kf(i)+3}], v{V_LDS} offset:{8192 + i*1024}")
    dma(-1)
    a("s_nop 7")
    for qb in range(2):
        sb = S(0, qb); m = V_T0; t = V_T0 + 1
        a(f"v_max3_f32 v{m}, v{sb}, v{sb+1}, v{sb+2}")
        for r in range(3, 15, 2):
            a(f"v_max3_f32 v{m}, v{m}, v{sb+r}, v{sb+r+1}")
        a(f"v_max_f32 v{m}, v{m}, v{sb+15}")
        a(f"v_mov_b32 v{t}, v{m}")
        a("s_nop 1")
        a(f"v_permlane32_swap_b32 v{m}, v{t}")
        a("s_nop 1")
        a(f"v_max_f32 v{m}, v{m}, v{t}")
        for r in range(16):
            a(f"v_sub_f32 v{sb+r}, v{sb+r}, v{m}")
            a(f"v_sub_f32 v{CI(qb)+r}, 0, v{m}")
    stamp(a, opt, 6)
    gen_round(a, 0, "r0", first=True)
    stamp(a, opt, 7)
    a(f"s_mov_b32 s{S_LOOP}, 5")
    a.raw(".p2align 6")
    a.label("L_loop")
    n0 = len(a.lines)
    gen_round(a, 1, "rl")
    body = a.lines[n0:]
    b = Asm(); b.vm = list(a.vm)
    sv_sites, sv_spins = list(SITES), list(SPINS)
    gen_round(b, 1, "rl")
    SITES[:] = sv_sites; SPINS[:] = sv_spins
    assert b.lines == body, "loop body not steady"
    a(f"s_sub_u32 s{S_LOOP}, s{S_LOOP}, 1")
    a(f"s_cmp_lg_u32 s{S_LOOP}, 0")
    a("s_cbranch_scc1 L_loop")
    stamp(a, opt, 8)
    gen_round(a, 6, "r6", produce=False)
    gen_round(a, 7, "r7", produce=False, final=True)
    gen_step(a, 64, "s64", do_qk=False, do_sm=False, do_dma=False, do_kread=False, bar_tags=[dma_tag(61)])
    stamp(a, opt, 9)
    a("s_nop 7")
    for qb in range(2):
        l = LT(qb); t = V_T0 + qb
        a(f"v_mov_b32 v{t}, v{l}")
        a("s_nop 1")
        a(f"v_permlane32_swap_b32 v{l}, v{t}")
        a("s_nop 1")
        a(f"v_add_f32 v{l}, v{l}, v{t}")
        a(f"v_rcp_f32 v{l}, v{l}")
    a("v_and_b32 v8, 31, v0")
    a("v_bfe_u32 v9, v0, 5, 1")
    a("v_lshlrev_b32 v10, 8, v8")
    a("v_and_b32 v11, 15, v8")
    a("v_lshl_add_u32 v10, v11, 4, v10")
    a("v_lshl_add_u32 v10, v9, 3, v10")
    a(f"v_add_u32 v10, s{S_LQ}, v10")
    for c16 in range(16):
        db, g = c16 >> 2, c16 & 3
        ad = 24 + (c16 & 3)
        a(f"v_xor_b32 v{ad}, {c16 << 4}, v10")
        for qb in range(2):
            t = 32 + ((c16 * 2 + qb) & 7) * 8
            for e in range(4):
                a(f"v_accvgpr_read_b32 v{t+e}, a{O(qb,db)+g*4+e}")
            for e in range(4):
                a(f"v_mul_f32 v{t+e}, v{t+e}, v{LT(qb)}")
            a(f"v_cvt_pk_bf16_f32 v{t+4}, v{t}, v{t+1}")
            a(f"v_cvt_pk_bf16_f32 v{t+5}, v{t+2}, v{t+3}")
            a(f"ds_write_b64 v{ad}, v[{t+4}:{t+5}] offset:{qb*8192}")
    a("v_and_b32 v4, 63, v0")
    a("v_lshrrev_b32 v8, 4, v4")
    a("v_and_b32 v9, 15, v4")
    a("v_xor_b32 v9, v9, v8")
    for k in range(4):
        a(f"v_xor_b32 v{10+k}, {4*k}, v9")
        a(f"v_lshlrev_b32 v{10+k}, 4, v{10+k}")
        a(f"v_lshl_add_u32 v{10+k}, v8, 8, v{10+k}")
        a(f"v_add_u32 v{10+k}, s{S_LQ}, v{10+k}")
    a("s_lshr_b32 s4, s2, 5")
    a("s_lshl_b32 s4, s4, 16")
    a(f"s_lshl_b32 s5, s{S_WAVE}, 14")
    a("s_add_u32 s4, s4, s5")
    a(f"s_add_u32 s4, s4, s{S_HEADOFF}")
    a("s_waitcnt lgkmcnt(0)")
    for t in range(16):
        a(f"ds_read_b128 v[{64+t*4}:{67+t*4}], v{10+(t&3)} offset:{t*1024}")
    for t in range(16):
        a(f"s_waitcnt lgkmcnt({15-t})")
        a(f"buffer_store_dwordx4 v[{64+t*4}:{67+t*4}], v{V_LDS}, {sr(R_OUT)}, s4 offen offset:{(t&3)*1024}")
        if t & 3 == 3:
            a("s_add_u32 s4, s4, 4096")
    if opt.get("stamp"):
        a("s_waitcnt vmcnt(0)")
        stamp(a, opt, 10)
        a("s_lshl_b32 s4, s2, 2")
        a(f"s_add_u32 s4, s4, s{S_WAVE}")
        a("s_lshl_b32 s4, s4, 9")
        a("s_add_u32 s4, s4, 0x4000000")
        a("v_and_b32 v8, 63, v0")
        a("v_lshlrev_b32 v8, 2, v8")
        a(f"buffer_store_dword v5, v8, {sr(R_WS)}, s4 offen")
        a(f"buffer_store_dword v6, v8, {sr(R_WS)}, s4 offen offset:256")
    a.label("L_done")
    a("s_endpgm")
    for tag, par in SITES:
        a.label(f"L_rare_{tag}")
        a(f"s_call_b64 s[{S_RET}:{S_RET+1}], L_rare_sub{par}")
        a(f"s_branch L_join_{tag}")
    for tag in SPINS:
        gen_spin(a, tag)
    gen_rare(a, 0)
    gen_rare(a, 1)

def main(out, opt):
    a = Asm()
    hdr = open(f"cdna_kernels/{NAME}.s.ref").read().splitlines()
    for line in hdr:
        if line.startswith(";") and "@launch" not in line:
            a.raw(line)
    a.raw("; @launch grid=(256,1,1) block=(256,1,1) lds=131072")
    a.raw('.amdgcn_target "amdgcn-amd-amdhsa--gfx950"')
    a.raw(".text")
    gen_kernel(a, opt)
    a.raw('.section .rodata,"a"')
    a.raw(".p2align 6")
    a.raw(f".amdhsa_kernel {KNAME}")
    a.raw("  .amdhsa_next_free_vgpr 512")
    a.raw("  .amdhsa_next_free_sgpr 102")
    a.raw("  .amdhsa_accum_offset 256")
    a.raw("  .amdhsa_group_segment_fixed_size 0")
    a.raw("  .amdhsa_kernarg_size 112")
    a.raw("  .amdhsa_user_sgpr_count 2")
    a.raw("  .amdhsa_user_sgpr_kernarg_segment_ptr 1")
    a.raw("  .amdhsa_system_sgpr_workgroup_id_x 1")
    a.raw(".end_amdhsa_kernel")
    open(out, "w").write(a.text())

if __name__ == "__main__":
    out = sys.argv[1] if len(sys.argv) > 1 else f"f2.s"
    opt = dict(kv.split("=") for kv in sys.argv[2:])
    main(out, opt)
```
